```python
import torch

def _softmax(x, axis=-1):
    return torch.softmax(x, dim=axis)
def _gelu(x):
    return torch.nn.functional.gelu(x, approximate="tanh")
def _silu(x):
    return torch.nn.functional.silu(x)
def _sigmoid(x):
    return torch.sigmoid(x)
def _layernorm(x, axis=-1, eps=1e-5):
    m = x.mean(dim=axis, keepdim=True)
    v = x.var(dim=axis, keepdim=True, unbiased=False)
    return (x - m) / torch.sqrt(v + eps)
def _scatter_add(tgt, idx, src, axis=0):
    return tgt.clone().index_add_(axis, idx, src)
def _segment_sum(src, seg, n):
    out = torch.zeros((n,) + src.shape[1:], dtype=src.dtype)
    return out.index_add_(0, seg, src)
def _pad(x, pw):
    flat = tuple(v for pair in reversed(pw) for v in pair)
    return torch.nn.functional.pad(x, flat)

kernel_name = 'standalone__gqa_softmax__near_ridge'

def setup_inputs():

    _w = (lambda a: (lambda t: t.to(torch.bfloat16) if t.is_floating_point() else t)(torch.as_tensor(a)))
    B, Hq, Hkv, Sq, Sk, D = 8, 32, 8, 384, 384, 128
    return {
        "q": _w((lambda *s: torch.randn(*s, dtype=torch.bfloat16) * 0.8)(B, Hq, Sq, D)),
        "k": _w((lambda *s: torch.randn(*s, dtype=torch.bfloat16) * 0.8)(B, Hkv, Sk, D)),
        "v": _w((lambda *s: torch.randn(*s, dtype=torch.bfloat16) * 0.05)(B, Hkv, Sk, D)),
    }

def reference(q, k, v):
    B, Hq, Sq, D = q.shape
    Hkv = k.shape[1]
    rep = Hq // Hkv
    k = (lambda x, n, axis: torch.repeat_interleave(x, n, dim=axis))(k, rep, axis=1)
    v = (lambda x, n, axis: torch.repeat_interleave(x, n, dim=axis))(v, rep, axis=1)
    scale = D ** -0.5
    scores = torch.einsum("bhqd,bhkd->bhqk", q, k) * scale
    p = _softmax(scores, axis=-1)
    return torch.einsum("bhqk,bhkd->bhqd", p, v)
```

```python
import sys
KN = "standalone__gqa_softmax__near_ridge_kernel"
def wrap(body, grid, block, lds=0, vgpr=256, accum=256):
    return f"""; @launch grid=({grid},1,1) block=({block},1,1) lds={lds}
.amdgcn_target "amdgcn-amd-amdhsa--gfx950"
.text
.globl {KN}
.p2align 8
.type {KN},@function
{KN}:
{body}
s_endpgm
.section .rodata,"a"
.p2align 6
.amdhsa_kernel {KN}
  .amdhsa_next_free_vgpr {vgpr}
  .amdhsa_next_free_sgpr 102
  .amdhsa_accum_offset {accum}
  .amdhsa_group_segment_fixed_size 0
  .amdhsa_kernarg_size 48
  .amdhsa_user_sgpr_count 2
  .amdhsa_user_sgpr_kernarg_segment_ptr 1
  .amdhsa_system_sgpr_workgroup_id_x 1
.end_amdhsa_kernel
"""
def timed(tests, iters=200):
    L = []
    A = L.append
    A("s_load_dwordx2 s[4:5], s[0:1], 40")
    A("s_waitcnt lgkmcnt(0)")
    A("s_mov_b32 s8, s4"); A("s_mov_b32 s9, s5"); A("s_mov_b32 s10, 0x100000"); A("s_mov_b32 s11, 0x20000")
    for r in range(1, 128): A(f"v_mov_b32 v{r}, 0")
    A("v_lshrrev_b32 v130, 6, v0")
    A(f"v_mul_u32_u24 v130, {len(tests)*4}, v130")
    A("v_and_b32 v131, 63, v0"); A("v_lshlrev_b32 v131, 4, v131")
    for t, (name, ins) in enumerate(tests):
        A("s_barrier")
        A(f"s_mov_b32 s20, {iters}")
        A("s_memtime s[12:13]")
        A("s_waitcnt lgkmcnt(0)")
        A(".p2align 6")
        A(f"L{t}:")
        L.extend(ins)
        A("s_sub_u32 s20, s20, 1")
        A("s_cmp_lg_u32 s20, 0")
        A(f"s_cbranch_scc1 L{t}")
        A("s_waitcnt lgkmcnt(0)")
        A("s_nop 15");
        A("s_memtime s[14:15]")
        A("s_waitcnt lgkmcnt(0)")
        A("s_sub_u32 s14, s14, s12")
        A("v_mov_b32 v132, s14")
        A(f"buffer_store_dword v132, v130, s[8:11], 0 offen offset:{t*4}")
        A("s_waitcnt vmcnt(0)")
    return "\n".join(L)

def fma(i): return f"v_fma_f32 v{1+i%32}, v40, v41, v{1+i%32}"
def add(i): return f"v_add_f32 v{1+i%32}, v40, v{1+i%32}"
def exp(i): return f"v_exp_f32 v{1+i%32}, v41"
def max3(i): return f"v_max3_f32 v{1+i%32}, v40, v41, v{1+i%32}"
def cvt(i): return f"v_cvt_pk_bf16_f32 v{1+i%32}, v40, v41"
def pkadd(i): return f"v_pk_add_f32 v[{2+2*(i%16)}:{3+2*(i%16)}], v[40:41], v[{2+2*(i%16)}:{3+2*(i%16)}]"
def pkmul(i): return f"v_pk_mul_f32 v[{2+2*(i%16)}:{3+2*(i%16)}], v[40:41], v[{2+2*(i%16)}:{3+2*(i%16)}]"
def mfma(i): return f"v_mfma_f32_32x32x16_bf16 v[{64+16*(i%2)}:{79+16*(i%2)}], v[44:47], v[48:51], v[{64+16*(i%2)}:{79+16*(i%2)}]"
def mfma16(i): return f"v_mfma_f32_16x16x32_bf16 v[{64+4*(i%4)}:{67+4*(i%4)}], v[44:47], v[48:51], v[{64+4*(i%4)}:{67+4*(i%4)}]"
def dsr(i): return f"ds_read_b128 v[{100+4*(i%4)}:{103+4*(i%4)}], v131 offset:{1024*(i%8)}"
def dstr(i): return f"ds_read_b64_tr_b16 v[{100+2*(i%8)}:{101+2*(i%8)}], v131 offset:{1024*(i%8)}"
def snop(i): return "s_nop 0"
def salu(i): return "s_add_u32 s30, s30, 1"

def gap(fillers, n=16, m=mfma):
    out = []; c = 0
    for i in range(n):
        out.append(m(i))
        for f in fillers:
            out.append(f(c)); c += 1
    return out

tests = [
 ("fma x64", [fma(i) for i in range(64)]),
 ("add x64", [add(i) for i in range(64)]),
 ("exp x64", [exp(i) for i in range(64)]),
 ("max3 x64", [max3(i) for i in range(64)]),
 ("cvt x64", [cvt(i) for i in range(64)]),
 ("pkadd x64", [pkadd(i) for i in range(64)]),
 ("mfma x16", gap([])),
 ("mfma+4add x16", gap([add]*4)),
 ("mfma+6add", gap([add]*6)),
 ("mfma+exp+4add", gap([exp]+[add]*4)),
 ("mfma+exp+3add+dsr", gap([exp]+[add]*3+[dsr])),
 ("mfma+exp+3add+2dsr", gap([exp]+[add]*3+[dsr,dsr])),
 ("mfma+exp+4add+dsr+salu", gap([exp]+[add]*4+[dsr,salu])),
 ("mfma+exp+2add+pkadd", gap([exp]+[add]*2+[pkadd])),
 ("mfma+8add", gap([add]*8)),
 ("mfma+2exp+4add", gap([exp,exp]+[add]*4)),
 ("mfma16 x16", gap([], m=mfma16)),
 ("mfma16+2add", gap([add]*2, m=mfma16)),
 ("mfma16+exp+1add", gap([exp,add], m=mfma16)),
 ("mfma16+exp+2add", gap([exp,add,add], m=mfma16)),
 ("mfma+exp+3add+2dstr", gap([exp]+[add]*3+[dstr,dstr])),
 ("mfma+exp+4add+2snop", gap([exp]+[add]*4+[snop,snop])),
]
if __name__ == "__main__":
    for blk in (256, 512, 768):
        open(f"mb/issue_{blk}.s", "w").write(wrap(timed(tests), 1, blk, lds=16384, vgpr=136, accum=136))
    import json; json.dump([t[0] for t in tests], open("mb/issue_names.json", "w"))
```

```python
import sys
sys.path.insert(0, "gen")
from mb_issue import wrap
def gen(store_flags="", load_flags="", do_store=True, do_kv=True, do_q=True, early_store=False, share=True):
    L = []; A = L.append
    A("s_memrealtime s[40:41]")
    A("s_memtime s[42:43]")
    A("s_cmp_ge_u32 s2, 256"); A("s_cbranch_scc1 Lend")
    A("s_load_dwordx4 s[4:7], s[0:1], 0")
    A("s_load_dwordx4 s[8:11], s[0:1], 16")
    A("s_load_dwordx2 s[12:13], s[0:1], 40")
    if share:
        A("s_and_b32 s20, s2, 7"); A("s_lshr_b32 s21, s2, 3")
        A("s_lshr_b32 s22, s21, 2"); A("s_lshl_b32 s23, s20, 3"); A("s_add_u32 s22, s22, s23")
        A("s_and_b32 s21, s21, 3"); A("s_lshl_b32 s23, s22, 2"); A("s_add_u32 s23, s23, s21")
    else:
        A("s_lshr_b32 s22, s2, 2"); A("s_mov_b32 s23, s2")
    A("s_mul_i32 s24, s23, 98304")
    A("s_mul_i32 s25, s22, 98304")
    A("v_lshrrev_b32 v1, 6, v0"); A("s_nop 0"); A("v_readfirstlane_b32 s26, v1")
    A("v_and_b32 v2, 63, v0"); A("v_lshlrev_b32 v2, 4, v2")
    A("s_waitcnt lgkmcnt(0)")
    def srd(d, lo, size):
        A(f"s_mov_b32 s{d}, s{lo}"); A(f"s_mov_b32 s{d+1}, s{lo+1}"); A(f"s_mov_b32 s{d+2}, {size}"); A(f"s_mov_b32 s{d+3}, 0x20000")
    srd(48, 4, 25165824); srd(52, 6, 6291456); srd(56, 8, 6291456); srd(60, 10, 25165824); srd(64, 12, 0x1000000)
    A("s_lshl_b32 s27, s26, 10")
    A("s_add_u32 s28, s24, s27")
    A("s_add_u32 s29, s25, s27")
    seq = []
    order = []
    if do_q: order += [("q", c) for c in range(4)]
    if do_kv:
        for j in range(12): order += [("k", j), ("v", j)]
    if do_q: order += [("q", c) for c in range(4, 12)]
    for kind, c in order:
        if kind == "q":
            A(f"s_add_u32 s30, s28, {c*8192}")
            A(f"buffer_load_dwordx4 v[{8+4*c}:{11+4*c}], v2, s[48:51], s30 offen {load_flags}")
        else:
            slot = (2*c + (kind == "v")) % 20
            A(f"s_add_u32 s31, s27, {slot*8192}")
            A("s_mov_b32 m0, s31")
            A(f"s_add_u32 s30, s29, {c*8192}")
            A(f"buffer_load_dwordx4 v2, s[{52 if kind=='k' else 56}:{55 if kind=='k' else 59}], s30 offen lds")
    n = len(order)
    stamps = [n-1, n-4, n-5, n-12, n-20, n-28, 4, 0] if (do_q and do_kv) else [n-1, n//2, 0]
    st = 68
    for i, s in enumerate(stamps):
        A(f"s_waitcnt vmcnt({max(s,0)})")
        A(f"s_memtime s[{st+2*i}:{st+2*i+1}]")
    A("s_waitcnt lgkmcnt(0)")
    if do_store:
        for c in range(12):
            A(f"s_add_u32 s30, s28, {c*8192}")
            A(f"buffer_store_dwordx4 v[{8+4*c}:{11+4*c}], v2, s[60:63], s30 offen {store_flags}")
        A("s_waitcnt vmcnt(0)")
    i = len(stamps)
    A(f"s_memtime s[{st+2*i}:{st+2*i+1}]")
    A("s_memrealtime s[44:45]")
    A("s_waitcnt lgkmcnt(0)")
    A("s_lshl_b32 s30, s2, 3"); A("s_add_u32 s30, s30, s26"); A("s_lshl_b32 s30, s30, 6")
    A("v_mov_b32 v3, 0")
    vals = ["s40", "s44"]
    for i in range(len(stamps)+1):
        A(f"s_sub_u32 s{st+2*i}, s{st+2*i}, s42"); vals.append(f"s{st+2*i}")
    A("s_getreg_b32 s46, hwreg(HW_REG_XCC_ID)"); vals.append("s46")
    for i, vv in enumerate(vals):
        A(f"v_mov_b32 v4, {vv}")
        A(f"buffer_store_dword v4, v3, s[64:67], s30 offen offset:{4*i}")
    A("Lend:")
    return wrap("\n".join(L), 256, 512, lds=163840, vgpr=64, accum=64)
if __name__ == "__main__":
    V = {
     "plain": dict(),
     "nt": dict(store_flags="nt"),
     "sc1": dict(store_flags="sc1"),
     "sc01": dict(store_flags="sc0 sc1"),
     "nostore": dict(do_store=False),
     "noshare": dict(share=False),
     "qnt": dict(load_flags="nt", store_flags="nt"),
    }
    for n, kw in V.items(): open(f"mb/stream_{n}.s", "w").write(gen(**kw))
```
